```python
import torch

def _softmax(x, axis=-1):
    return torch.softmax(x, dim=axis)
def _gelu(x):
    return torch.nn.functional.gelu(x, approximate="tanh")
def _silu(x):
    return torch.nn.functional.silu(x)
def _sigmoid(x):
    return torch.sigmoid(x)
def _layernorm(x, axis=-1, eps=1e-5):
    m = x.mean(dim=axis, keepdim=True)
    v = x.var(dim=axis, keepdim=True, unbiased=False)
    return (x - m) / torch.sqrt(v + eps)
def _scatter_add(tgt, idx, src, axis=0):
    return tgt.clone().index_add_(axis, idx, src)
def _segment_sum(src, seg, n):
    out = torch.zeros((n,) + src.shape[1:], dtype=src.dtype)
    return out.index_add_(0, seg, src)
def _pad(x, pw):
    flat = tuple(v for pair in reversed(pw) for v in pair)
    return torch.nn.functional.pad(x, flat)

kernel_name = 'interleave_layers__linear_kernel_hedgehog__softmax_full_mha__prompt'

def setup_inputs():

    _w = (lambda a: (lambda t: t.to(torch.bfloat16) if t.is_floating_point() else t)(torch.as_tensor(a)))
    def _A_setup():
        B, S, D, H = 1, 2048, 576, 32
        Dh = D // H
        return {
            "x": _w((lambda *s: torch.randn(*s, dtype=torch.bfloat16) * 0.05)(B, S, D)),
            "wqkv": _w((lambda *s: torch.randn(*s, dtype=torch.bfloat16) * 0.4)(D, 3 * D)),
            "w_phi": _w((lambda *s: torch.randn(*s, dtype=torch.bfloat16) * 0.4)(H, Dh, Dh) * (Dh ** -0.5)),
            "wo": _w((lambda *s: torch.randn(*s, dtype=torch.bfloat16) * 0.05)(D, D)),
        }
    _A_in = _A_setup()

    def _B_setup():
        B, S, D = 1, 2048, 576
        return {
            "x": _w((lambda *s: torch.randn(*s, dtype=torch.bfloat16) * 0.05)(B, S, D)),
            "wqkv": _w((lambda *s: torch.randn(*s, dtype=torch.bfloat16) * 0.1)(D, 3 * D)),
            "wo": _w((lambda *s: torch.randn(*s, dtype=torch.bfloat16) * 0.05)(D, D)),
        }
    _B_in = _B_setup()

    return {
        "A_x": _A_in["x"],
        "A_wqkv": _A_in["wqkv"],
        "A_w_phi": _A_in["w_phi"],
        "A_wo": _A_in["wo"],
        "B_x": _B_in["x"],
        "B_wqkv": _B_in["wqkv"],
        "B_wo": _B_in["wo"],
    }

def reference(A_x, A_wqkv, A_w_phi, A_wo, B_x, B_wqkv, B_wo):
    def _A_ref(x, wqkv, w_phi, wo):
        B, S, D = x.shape
        H = 32; Dh = D // H
        qkv = (lambda x, *d: x.permute(*d))((x @ wqkv).reshape(B, S, 3, H, Dh), 2, 0, 3, 1, 4)
        q, k, v = qkv[0], qkv[1], qkv[2]
        pq = torch.einsum("bhsd,hdf->bhsf", q, w_phi)
        pk = torch.einsum("bhsd,hdf->bhsf", k, w_phi)
        phi_q = torch.concatenate([_softmax(pq, axis=-1), _softmax(-pq, axis=-1)], axis=-1)
        phi_k = torch.concatenate([_softmax(pk, axis=-1), _softmax(-pk, axis=-1)], axis=-1)
        kv = torch.einsum("bhsf,bhsd->bhfd", phi_k, v)
        z  = torch.einsum("bhsf->bhf", phi_k)
        num = torch.einsum("bhqf,bhfd->bhqd", phi_q, kv)
        den = torch.einsum("bhqf,bhf->bhq", phi_q, z)[..., None] + 1e-6
        o = num / den
        return (lambda x, *d: x.permute(*d))(o, 0, 2, 1, 3).reshape(B, S, D) @ wo

    def _B_ref(x, wqkv, wo):
        B, S, D = x.shape
        H = 32; Dh = D // H
        qkv = (lambda x, *d: x.permute(*d))((x @ wqkv).reshape(B, S, 3, H, Dh), 2, 0, 3, 1, 4)
        q, k, v = qkv[0], qkv[1], qkv[2]
        scale = Dh ** -0.5
        scores = torch.einsum("bhqd,bhkd->bhqk", q, k) * scale
        p = _softmax(scores, axis=-1)
        o = torch.einsum("bhqk,bhkd->bhqd", p, v)
        return (lambda x, *d: x.permute(*d))(o, 0, 2, 1, 3).reshape(B, S, D) @ wo

    x = A_x
    x = x + _A_ref(_layernorm(x, axis=-1), A_wqkv, A_w_phi, A_wo)
    x = x + _B_ref(_layernorm(x, axis=-1), B_wqkv, B_wo)
    x = x + _A_ref(_layernorm(x, axis=-1), A_wqkv, A_w_phi, A_wo)
    x = x + _B_ref(_layernorm(x, axis=-1), B_wqkv, B_wo)
    return x
```

```python
from layout import *
from gen import Kern, srd, MFMA

def common_head(k, end, nwg):
    k(f"s_cmp_ge_u32 s2, {nwg}\ns_cbranch_scc1 {end}")
    k("s_load_dwordx2 s[4:5], s[0:1], 72\ns_load_dwordx2 s[6:7], s[0:1], 0\ns_load_dwordx2 s[36:37], s[0:1], 56")
    k("v_lshrrev_b32 v1, 6, v0\ns_nop 0\nv_readfirstlane_b32 s3, v1")
    k("v_and_b32 v1, 63, v0\nv_and_b32 v2, 31, v1\nv_lshrrev_b32 v3, 5, v1\nv_lshlrev_b32 v4, 4, v1")
    k("s_mov_b32 s30, -1\ns_mov_b32 s31, 0")
    k("s_waitcnt lgkmcnt(0)")
    srd(k, 12, 4, 0, WS_SIZE)

def gen_a2(name):
    k = Kern(name, vgpr=256, sgpr=64)
    end = f"L_{name}_end"
    common_head(k, end, 256)
    k("s_lshr_b32 s18, s2, 3      ; head\ns_and_b32 s16, s2, 7     ; qb")
    k(f"s_lshl_b32 s22, s18, 5\ns_lshl_b32 s23, s3, 3\ns_add_u32 s22, s22, s23\ns_lshl_b32 s22, s22, 13\ns_add_u32 s22, s22, {KVP}")
    ACCR = 16
    BUF = 64
    for b in range(2):
        for r in range(4):
            for i in range(8):
                k(f"buffer_load_dwordx4 v[{BUF+32*r+4*i}:{BUF+32*r+4*i+3}], v4, s[12:15], s22 offen offset:{1024*(i&3)}")
                if i == 3 or i == 7: k("s_add_u32 s22, s22, 4096")
        k("s_waitcnt vmcnt(0)")
        for r in range(4):
            for j in range(32):
                if b == 0 and r == 0: k(f"v_mov_b32 v{ACCR+j}, v{BUF+j}")
                else: k(f"v_add_f32 v{ACCR+j}, v{ACCR+j}, v{BUF+32*r+j}")
    k("s_lshl_b32 s22, s3, 13\nv_add_u32 v5, s22, v4")
    for i in range(8):
        k(f"ds_write_b128 v5, v[{ACCR+4*i}:{ACCR+4*i+3}] offset:{1024*i}")
    k("s_waitcnt lgkmcnt(0)\ns_barrier")
    for w in range(4):
        for i in range(8):
            k(f"ds_read_b128 v[{BUF+32*w+4*i}:{BUF+32*w+4*i+3}], v4 offset:{8192*w+1024*i}")
    k("s_waitcnt lgkmcnt(0)")
    for j in range(32):
        k(f"v_add_f32 v{ACCR+j}, v{BUF+j}, v{BUF+32+j}\nv_add_f32 v{BUF+64+j}, v{BUF+64+j}, v{BUF+96+j}\nv_add_f32 v{ACCR+j}, v{ACCR+j}, v{BUF+64+j}")
    KVF_ = 48
    for pn in range(2):
        for j in range(5):
            k(f"v_cvt_pk_bf16_f32 v{KVF_+8*pn+j}, v{ACCR+16*pn+2*j}, v{ACCR+16*pn+2*j+1}")
        k(f"v_cndmask_b32 v{KVF_+8*pn+4}, 0, v{KVF_+8*pn+4}, s[30:31]")
        for j in range(5, 8): k(f"v_mov_b32 v{KVF_+8*pn+j}, 0")
    PQ = 64; NUM = 80
    for tt in range(2):
        k(f"s_lshl_b32 s22, s16, 3\ns_lshl_b32 s23, s3, 1\ns_add_u32 s22, s22, s23\ns_add_u32 s22, s22, {tt}    ; T")
        k(f"s_lshl_b32 s23, s18, 6\ns_add_u32 s23, s23, s22\ns_lshl_b32 s23, s23, 12\ns_add_u32 s23, s23, {PHIQ}")
        for i in range(4):
            k(f"buffer_load_dwordx4 v[{PQ+4*i}:{PQ+4*i+3}], v4, s[12:15], s23 offen offset:{1024*i}")
        k(f"s_lshl_b32 s22, s22, 5\nv_add_u32 v6, s22, v2\nv_mul_u32_u24 v6, 1152, v6\ns_mul_i32 s23, s18, 36\nv_lshl_add_u32 v6, v3, 3, v6\nv_add_u32 v6, s23, v6")
        k("s_waitcnt vmcnt(0)")
        for i in range(4):
            c = "0" if i == 0 else f"v[{NUM}:{NUM+15}]"
            k(f"{MFMA} v[{NUM}:{NUM+15}], v[{KVF_+4*i}:{KVF_+4*i+3}], v[{PQ+4*i}:{PQ+4*i+3}], {c}")
        k.nop(16)
        k(f"v_mov_b32 v8, v{NUM+10}\nv_mov_b32 v9, v{NUM+10}")
        k.nop(2)
        k("v_permlane32_swap_b32 v8, v9")
        k("v_cvt_pk_bf16_f32 v8, v8, v8\nv_lshlrev_b32 v8, 16, v8\nv_add_f32 v8, 0x358637bd, v8\nv_cvt_pk_bf16_f32 v8, v8, v8\nv_lshlrev_b32 v8, 16, v8\nv_rcp_f32 v8, v8\ns_nop 0")
        for j in range(0, 10, 2):
            k(f"v_cvt_pk_bf16_f32 v9, v{NUM+j}, v{NUM+j+1}\nv_lshlrev_b32 v{NUM+j}, 16, v9\nv_and_b32 v{NUM+j+1}, 0xffff0000, v9")
            k(f"v_mul_f32 v{NUM+j}, v{NUM+j}, v8\nv_mul_f32 v{NUM+j+1}, v{NUM+j+1}, v8")
            k(f"v_cvt_pk_bf16_f32 v{100+j//2}, v{NUM+j}, v{NUM+j+1}")
        for a in range(2):
            k(f"buffer_store_dword v{100+2*a}, v6, s[12:15], s{24} offen offset:{16*a}" .replace("s24", "s25"))
            k(f"buffer_store_dword v{101+2*a}, v6, s[12:15], s25 offen offset:{16*a+4}")
        k("s_mov_b64 exec, s[30:31]")
        k("buffer_store_dword v104, v6, s[12:15], s25 offen offset:32")
        k("s_mov_b64 exec, -1")
    k.label(end)
    k.L.insert(k.L.index("    s_lshr_b32 s18, s2, 3      ; head"), f"    s_mov_b32 s25, {OB}")
    return k, (256, 256, 32768)

def gen_out(name, wo_off, xsrc, xdst):
    k = Kern(name, vgpr=128, sgpr=64)
    end = f"L_{name}_end"
    common_head(k, end, 288)
    if xsrc is None: srd(k, 8, 6, 0, S*D*2)
    else: srd(k, 8, 4, xsrc, S*D*2)
    if xdst is None: srd(k, 40, 36, 0, S*D*2)
    else: srd(k, 40, 4, xdst, S*D*2)
    m, sh = 7282, 16
    k(f"s_mul_i32 s16, s2, {m}\ns_lshr_b32 s16, s16, {sh}\ns_mul_i32 s17, s16, 9\ns_sub_u32 s17, s2, s17")
    k("s_lshl_b32 s16, s16, 1\ns_and_b32 s18, s3, 1\ns_add_u32 s16, s16, s18")
    k("s_lshl_b32 s17, s17, 1\ns_lshr_b32 s18, s3, 1\ns_add_u32 s17, s17, s18")
    k(f"s_mul_i32 s19, s17, {KST*1024}\ns_add_u32 s19, s19, {wo_off}")
    k(f"s_lshl_b32 s20, s16, 5\nv_add_u32 v5, s20, v2\nv_mul_u32_u24 v5, 1152, v5\nv_lshl_add_u32 v6, v3, 4, v5\ns_mov_b32 s21, {OB}")
    ACC = 16
    PD = 4
    WR = lambda s: 32 + 8*(s % (PD+1))
    def load(s):
        k(f"buffer_load_dwordx4 v[{WR(s)}:{WR(s)+3}], v4, s[12:15], s19 offen\nbuffer_load_dwordx4 v[{WR(s)+4}:{WR(s)+7}], v6, s[12:15], s21 offen offset:{32*s}\ns_add_u32 s19, s19, 1024")
    for s in range(PD): load(s)
    for s in range(KST):
        if s + PD < KST: load(s + PD)
        k(f"s_waitcnt vmcnt({2*(min(s+PD, KST-1)-s)})")
        c = "0" if s == 0 else f"v[{ACC}:{ACC+15}]"
        k(f"{MFMA} v[{ACC}:{ACC+15}], v[{WR(s)}:{WR(s)+3}], v[{WR(s)+4}:{WR(s)+7}], {c}")
    k("s_lshl_b32 s20, s17, 6\nv_lshl_add_u32 v7, v3, 3, v5\nv_add_u32 v7, s20, v7")
    for a in range(4):
        k(f"buffer_load_dwordx2 v[{80+2*a}:{81+2*a}], v7, s[8:11], 0 offen offset:{16*a}")
    k.nop(16)
    for j in range(8):
        k(f"v_cvt_pk_bf16_f32 v{90+j}, v{ACC+2*j}, v{ACC+2*j+1}")
    k("s_waitcnt vmcnt(0)")
    for j in range(8):
        k(f"v_lshlrev_b32 v100, 16, v{90+j}\nv_and_b32 v101, 0xffff0000, v{90+j}\nv_lshlrev_b32 v102, 16, v{80+j}\nv_and_b32 v103, 0xffff0000, v{80+j}")
        k(f"v_add_f32 v100, v100, v102\nv_add_f32 v101, v101, v103\nv_cvt_pk_bf16_f32 v{90+j}, v100, v101")
    for a in range(4):
        k(f"buffer_store_dwordx2 v[{90+2*a}:{91+2*a}], v7, s[40:43], 0 offen offset:{16*a}")
    k.label(end)
    return k, (288, 256, 0)
```

```python
import struct
from layout import *
from gen import Kern, srd, MFMA
from k_a2out import common_head

def gen_attn(name):
    k = Kern(name, vgpr=128, sgpr=64)
    end = f"L_{name}_end"
    common_head(k, end, 256)
    c = (18 ** -0.5) * 1.4426950408889634
    cbits = struct.unpack("<I", struct.pack("<f", c))[0]
    k(f"s_lshr_b32 s18, s2, 3\ns_and_b32 s16, s2, 7\ns_mov_b32 s25, {OB}\ns_mov_b32 s33, {cbits}")
    k("s_lshl_b32 s22, s16, 3\ns_add_u32 s22, s22, s3      ; T")
    k(f"s_lshl_b32 s23, s18, 6\ns_add_u32 s23, s23, s22\ns_lshl_b32 s23, s23, 11\ns_add_u32 s23, s23, {QF}")
    k("buffer_load_dwordx4 v[8:11], v4, s[12:15], s23 offen\nbuffer_load_dwordx4 v[12:15], v4, s[12:15], s23 offen offset:1024")
    k(f"s_lshl_b32 s19, s18, 18\ns_add_u32 s19, s19, {KVF}")
    k("v_lshlrev_b32 v5, 4, v0     ; tid*16")
    G = 96
    def gload():
        for i in range(4):
            k(f"buffer_load_dwordx4 v[{G+4*i}:{G+4*i+3}], v5, s[12:15], s19 offen")
            k("s_add_u32 s19, s19, 8192")
    def lwrite(vaddr):
        for i in range(4):
            k(f"ds_write_b128 {vaddr}, v[{G+4*i}:{G+4*i+3}] offset:{8192*i}")
    gload()
    for j in range(16): k(f"v_mov_b32 v{48+j}, 0")
    k("v_mov_b32 v16, 0xff800000")
    k("v_mov_b32 v6, v5\nv_mov_b32 v7, v4")
    k("s_waitcnt vmcnt(0)")
    lwrite("v6")
    k("s_waitcnt lgkmcnt(0)\ns_barrier")
    k("v_xor_b32 v6, 0x8000, v6")
    k("s_mov_b32 s20, 0")
    loop = f"L_{name}_loop"
    k.label(loop)
    k("s_cmp_eq_u32 s20, 7")
    k(f"s_cbranch_scc1 L_{name}_nog")
    gload()
    k.label(f"L_{name}_nog")
    KB = lambda t: 72 + 8*(t % 2)
    def kread(t):
        k(f"ds_read_b128 v[{KB(t)}:{KB(t)+3}], v7 offset:{4096*t}\nds_read_b128 v[{KB(t)+4}:{KB(t)+7}], v7 offset:{4096*t+1024}")
    kread(0)
    Sg, O, P = 32, 48, 64
    for t in range(8):
        k(f"ds_read_b128 v[88:91], v7 offset:{4096*t+2048}\nds_read_b128 v[92:95], v7 offset:{4096*t+3072}")
        if t < 7: kread(t+1)
        k(f"s_waitcnt lgkmcnt({4 if t < 7 else 2})")
        k(f"{MFMA} v[{Sg}:{Sg+15}], v[{KB(t)}:{KB(t)+3}], v[8:11], 0")
        k(f"{MFMA} v[{Sg}:{Sg+15}], v[{KB(t)+4}:{KB(t)+7}], v[12:15], v[{Sg}:{Sg+15}]")
        k.nop(16)
        k(f"v_max3_f32 v17, v{Sg}, v{Sg+1}, v{Sg+2}")
        for j in range(3, 15, 2):
            k(f"v_max3_f32 v17, v17, v{Sg+j}, v{Sg+j+1}")
        k(f"v_max_f32 v17, v17, v{Sg+15}")
        k("v_mov_b32 v18, v17")
        k.nop(2)
        k("v_permlane32_swap_b32 v17, v18\nv_max_f32 v17, v17, v18")
        k("v_mul_f32 v17, s33, v17\nv_max_f32 v17, v16, v17\nv_sub_f32 v18, v16, v17\nv_mov_b32 v16, v17\nv_exp_f32 v18, v18")
        for j in range(16):
            k(f"v_fma_f32 v{Sg+j}, v{Sg+j}, s33, -v16")
        for j in range(16):
            k(f"v_exp_f32 v{Sg+j}, v{Sg+j}")
        for j in range(12):
            k(f"v_mul_f32 v{O+j}, v{O+j}, v18")
        for j in range(8):
            k(f"v_cvt_pk_bf16_f32 v{P+j}, v{Sg+2*j}, v{Sg+2*j+1}")
        k(f"s_waitcnt lgkmcnt({2 if t < 7 else 0})")
        k.nop(2)
        k(f"{MFMA} v[{O}:{O+15}], v[88:91], v[{P}:{P+3}], v[{O}:{O+15}]")
        k(f"{MFMA} v[{O}:{O+15}], v[92:95], v[{P+4}:{P+7}], v[{O}:{O+15}]")
    k("s_cmp_eq_u32 s20, 7")
    k(f"s_cbranch_scc1 L_{name}_fin")
    k("s_waitcnt vmcnt(0)")
    lwrite("v6")
    k("s_waitcnt lgkmcnt(0)\ns_barrier")
    k("v_xor_b32 v6, 0x8000, v6\nv_xor_b32 v7, 0x8000, v7\ns_add_u32 s20, s20, 1")
    k(f"s_branch {loop}")
    k.label(f"L_{name}_fin")
    k.nop(16)
    k(f"v_mov_b32 v17, v{O+10}\nv_mov_b32 v18, v{O+10}")
    k.nop(2)
    k("v_permlane32_swap_b32 v17, v18\nv_rcp_f32 v17, v17\ns_nop 0")
    for j in range(0, 10, 2):
        k(f"v_mul_f32 v{O+j}, v{O+j}, v17\nv_mul_f32 v{O+j+1}, v{O+j+1}, v17\nv_cvt_pk_bf16_f32 v{P+j//2}, v{O+j}, v{O+j+1}")
    k("s_lshl_b32 s22, s22, 5\nv_add_u32 v6, s22, v2\nv_mul_u32_u24 v6, 1152, v6\ns_mul_i32 s23, s18, 36\nv_lshl_add_u32 v6, v3, 3, v6\nv_add_u32 v6, s23, v6")
    for a in range(2):
        k(f"buffer_store_dword v{P+2*a}, v6, s[12:15], s25 offen offset:{16*a}\nbuffer_store_dword v{P+1+2*a}, v6, s[12:15], s25 offen offset:{16*a+4}")
    k(f"s_mov_b64 exec, s[30:31]\nbuffer_store_dword v{P+4}, v6, s[12:15], s25 offen offset:32\ns_mov_b64 exec, -1")
    k.label(end)
    return k, (256, 512, 65536)
```

```python
from layout import *
from gen import Kern, vr, sr, srd, MFMA

LOG2E = 0x3fb8aa3b
NEGINF = 0xff800000
POSINF = 0x7f800000

def half_reduce(k, op, reg, tmp):
    k(f"v_mov_b32 v{tmp}, v{reg}")
    k.nop(2)
    k(f"v_permlane32_swap_b32 v{reg}, v{tmp}")
    k(f"{op} v{reg}, v{reg}, v{tmp}")

def feature(k, P, x, pos, neg, t):
    for j in range(0, 10, 2):
        k(f"v_cvt_pk_bf16_f32 v{t}, v{P+j}, v{P+j+1}")
        k(f"v_lshlrev_b32 v{x+j}, 16, v{t}\nv_and_b32 v{x+j+1}, 0xffff0000, v{t}")
    mx, mn, a, b = t, t+1, t+2, t+3
    k(f"v_max3_f32 v{mx}, v{x}, v{x+1}, v{x+2}\nv_max3_f32 v{mx}, v{mx}, v{x+3}, v{x+4}\nv_max3_f32 v{mx}, v{mx}, v{x+5}, v{x+6}\nv_max_f32 v{mx}, v{mx}, v{x+7}")
    k(f"v_min3_f32 v{mn}, v{x}, v{x+1}, v{x+2}\nv_min3_f32 v{mn}, v{mn}, v{x+3}, v{x+4}\nv_min3_f32 v{mn}, v{mn}, v{x+5}, v{x+6}\nv_min_f32 v{mn}, v{mn}, v{x+7}")
    k(f"v_max_f32 v{a}, v{x+8}, v{x+9}\nv_min_f32 v{b}, v{x+8}, v{x+9}")
    k(f"v_mov_b32 v{t+4}, {NEGINF}\nv_mov_b32 v{t+5}, {POSINF}")
    k(f"v_cndmask_b32 v{a}, v{t+4}, v{a}, s[30:31]\nv_cndmask_b32 v{b}, v{t+5}, v{b}, s[30:31]")
    k(f"v_max_f32 v{mx}, v{mx}, v{a}\nv_min_f32 v{mn}, v{mn}, v{b}")
    half_reduce(k, "v_max_f32", mx, t+4)
    half_reduce(k, "v_min_f32", mn, t+4)
    k(f"s_mov_b32 s32, {LOG2E}")
    for j in range(10):
        k(f"v_sub_f32 v{P+j}, v{x+j}, v{mx}\nv_sub_f32 v{x+j}, v{mn}, v{x+j}")
    for j in range(10):
        k(f"v_mul_f32 v{P+j}, s32, v{P+j}\nv_mul_f32 v{x+j}, s32, v{x+j}")
    for j in range(10):
        k(f"v_exp_f32 v{P+j}, v{P+j}\nv_exp_f32 v{x+j}, v{x+j}")
    k("s_nop 0")
    for j in (8, 9):
        k(f"v_cndmask_b32 v{P+j}, 0, v{P+j}, s[30:31]\nv_cndmask_b32 v{x+j}, 0, v{x+j}, s[30:31]")
    sp, sn = t, t+1
    k(f"v_add_f32 v{sp}, v{P}, v{P+1}\nv_add_f32 v{sn}, v{x}, v{x+1}")
    for j in range(2, 10):
        k(f"v_add_f32 v{sp}, v{sp}, v{P+j}\nv_add_f32 v{sn}, v{sn}, v{x+j}")
    half_reduce(k, "v_add_f32", sp, t+4)
    half_reduce(k, "v_add_f32", sn, t+4)
    k(f"v_rcp_f32 v{sp}, v{sp}\nv_rcp_f32 v{sn}, v{sn}\ns_nop 0")
    for j in range(10):
        k(f"v_mul_f32 v{P+j}, v{P+j}, v{sp}\nv_mul_f32 v{x+j}, v{x+j}, v{sn}")
    for j in range(0, 10, 2):
        k(f"v_cvt_pk_bf16_f32 v{pos+j//2}, v{P+j}, v{P+j+1}\nv_cvt_pk_bf16_f32 v{neg+j//2}, v{x+j}, v{x+j+1}")
    for j in range(5, 8):
        k(f"v_mov_b32 v{pos+j}, 0\nv_mov_b32 v{neg+j}, 0")

def gen_lnqkv(name, kind, xsrc, wq_off):
    k = Kern(name, vgpr=256, sgpr=64)
    end = f"L_{name}_end"
    k(f"s_cmp_ge_u32 s2, 256\ns_cbranch_scc1 {end}")
    k("s_load_dwordx2 s[4:5], s[0:1], 72\ns_load_dwordx2 s[6:7], s[0:1], 0")
    k("v_lshrrev_b32 v1, 6, v0\ns_nop 0\nv_readfirstlane_b32 s3, v1")
    k("v_and_b32 v1, 63, v0\nv_and_b32 v2, 31, v1\nv_lshrrev_b32 v3, 5, v1\nv_lshlrev_b32 v4, 4, v1")
    k("s_lshr_b32 s16, s2, 3      ; rb\ns_and_b32 s17, s2, 7\ns_lshl_b32 s17, s17, 2\ns_add_u32 s18, s17, s3    ; head")
    k("s_mov_b32 s30, -1\ns_mov_b32 s31, 0")
    k("s_waitcnt lgkmcnt(0)")
    srd(k, 12, 4, 0, WS_SIZE)
    if xsrc is None: srd(k, 8, 6, 0, S*D*2)
    else: srd(k, 8, 4, xsrc, S*D*2)
    k("s_lshl_b32 s19, s16, 6\ns_lshl_b32 s20, s3, 4\ns_add_u32 s19, s19, s20")
    k("v_lshrrev_b32 v5, 3, v1\nv_add_u32 v5, s19, v5\nv_mul_u32_u24 v5, 1152, v5\nv_and_b32 v6, 7, v1\nv_lshl_add_u32 v5, v6, 4, v5")
    for p in range(2):
        for c in range(9):
            k(f"buffer_load_dwordx4 v[{16+36*p+4*c}:{19+36*p+4*c}], v5, s[8:11], 0 offen offset:{128*c}")
        if p == 0: k("v_add_u32 v5, 9216, v5")
    k(f"s_mul_i32 s19, s18, {KST*1024}\ns_add_u32 s19, s19, {wq_off}\ns_add_u32 s20, s19, {32*KST*1024}\ns_add_u32 s21, s19, {64*KST*1024}")
    T0 = 100
    for p in range(2):
        Dg = 16 + 36*p
        k(f"s_waitcnt vmcnt({9*(1-p)})")
        for c in range(9):
            for r in range(4):
                k(f"v_lshlrev_b32 v{T0+8*c+2*r}, 16, v{Dg+4*c+r}\nv_and_b32 v{T0+8*c+2*r+1}, 0xffff0000, v{Dg+4*c+r}")
        k(f"v_add_f32 v90, v{T0}, v{T0+1}\nv_add_f32 v91, v{T0+2}, v{T0+3}")
        for i in range(4, 72, 2):
            k(f"v_add_f32 v90, v90, v{T0+i}\nv_add_f32 v91, v91, v{T0+i+1}")
        k("v_add_f32 v90, v90, v91")
        def red8(reg):
            k.nop(2)
            k(f"v_add_f32_dpp v{reg}, v{reg}, v{reg} quad_perm:[1,0,3,2] row_mask:0xf bank_mask:0xf")
            k.nop(2)
            k(f"v_add_f32_dpp v{reg}, v{reg}, v{reg} quad_perm:[2,3,0,1] row_mask:0xf bank_mask:0xf")
            k.nop(2)
            k(f"v_add_f32_dpp v{reg}, v{reg}, v{reg} row_half_mirror row_mask:0xf bank_mask:0xf")
        red8(90)
        k("v_mul_f32 v90, 0x3ae38e39, v90     ; /576")
        k(f"v_sub_f32 v92, v{T0}, v90\nv_mul_f32 v91, v92, v92")
        for i in range(1, 72):
            k(f"v_sub_f32 v92, v{T0+i}, v90\nv_fmac_f32 v91, v92, v92")
        red8(91)
        k("v_mul_f32 v91, 0x3ae38e39, v91")
        k("v_cvt_pk_bf16_f32 v92, v90, v91\nv_lshlrev_b32 v90, 16, v92\nv_and_b32 v91, 0xffff0000, v92")
        k("v_add_f32 v91, 0x3727c5ac, v91\nv_cvt_pk_bf16_f32 v91, v91, v91\nv_lshlrev_b32 v91, 16, v91")
        k("v_sqrt_f32 v91, v91\ns_nop 0\nv_cvt_pk_bf16_f32 v91, v91, v91\nv_lshlrev_b32 v91, 16, v91\nv_rcp_f32 v91, v91\ns_nop 0")
        for i in range(0, 72, 2):
            o = Dg + i//2
            k(f"v_sub_f32 v{T0+i}, v{T0+i}, v90\nv_sub_f32 v{T0+i+1}, v{T0+i+1}, v90")
            k(f"v_cvt_pk_bf16_f32 v{o}, v{T0+i}, v{T0+i+1}")
            k(f"v_lshlrev_b32 v{T0+i}, 16, v{o}\nv_and_b32 v{T0+i+1}, 0xffff0000, v{o}")
            k(f"v_mul_f32 v{T0+i}, v{T0+i}, v91\nv_mul_f32 v{T0+i+1}, v{T0+i+1}, v91")
            k(f"v_cvt_pk_bf16_f32 v{o}, v{T0+i}, v{T0+i+1}")
        k(f"s_lshl_b32 s22, s3, 4\ns_add_u32 s22, s22, {8*p}\ns_lshr_b32 s23, s22, 5\ns_mul_i32 s23, s23, 36864\ns_and_b32 s22, s22, 31")
        k("v_lshrrev_b32 v7, 3, v1\nv_add_u32 v7, s22, v7\nv_lshlrev_b32 v7, 4, v7\nv_add_u32 v7, s23, v7")
        k("v_and_b32 v6, 7, v1\nv_lshrrev_b32 v8, 1, v6\nv_lshl_add_u32 v7, v8, 10, v7\nv_and_b32 v8, 1, v6\nv_lshl_add_u32 v7, v8, 9, v7")
        for c in range(9):
            k(f"ds_write_b128 v7, v[{Dg+4*c}:{Dg+4*c+3}] offset:{4096*c}")
    k("s_waitcnt lgkmcnt(0)\ns_barrier")
    ACC = [100, 116, 132, 148, 164, 180]
    for a in ACC:
        for j in range(16): k(f"v_mov_b32 v{a+j}, 0")
    k("v_add_u32 v5, 36864, v4")
    PD = 3
    WR = lambda st, t: 16 + 12*(st % (PD+1)) + 4*t
    XR = lambda st, tt: 64 + 8*(st % 3) + 4*tt
    def wload(s):
        for t in range(3):
            k(f"buffer_load_dwordx4 v[{WR(s,t)}:{WR(s,t)+3}], v4, s[12:15], s{19+t} offen")
        k("s_add_u32 s19, s19, 1024\ns_add_u32 s20, s20, 1024\ns_add_u32 s21, s21, 1024")
    def xload(s):
        k(f"ds_read_b128 v[{XR(s,0)}:{XR(s,0)+3}], v4 offset:{1024*s}")
        k(f"ds_read_b128 v[{XR(s,1)}:{XR(s,1)+3}], v5 offset:{1024*s}")
    for s in range(PD): wload(s)
    xload(0)
    for s in range(KST):
        if s + PD < KST: wload(s + PD)
        if s + 1 < KST: xload(s + 1)
        nout = 3 * (min(s + PD, KST - 1) - s)
        k(f"s_waitcnt vmcnt({nout}) lgkmcnt({2 if s+1<KST else 0})")
        for tt in range(2):
            x = XR(s, tt)
            k(f"{MFMA} v[{ACC[0+tt]}:{ACC[0+tt]+15}], v[{WR(s,0)}:{WR(s,0)+3}], v[{x}:{x+3}], v[{ACC[0+tt]}:{ACC[0+tt]+15}]")
            k(f"{MFMA} v[{ACC[2+tt]}:{ACC[2+tt]+15}], v[{WR(s,1)}:{WR(s,1)+3}], v[{x}:{x+3}], v[{ACC[2+tt]}:{ACC[2+tt]+15}]")
            k(f"{MFMA} v[{ACC[4+tt]}:{ACC[4+tt]+15}], v[{x}:{x+3}], v[{WR(s,2)}:{WR(s,2)+3}], v[{ACC[4+tt]}:{ACC[4+tt]+15}]")
    k.nop(16)
    k("v_cmp_eq_u32 s[34:35], 18, v2\nv_mov_b32 v6, 1.0")
    k.nop(2)
    for tt in range(2):
        for j in range(16):
            k(f"v_cndmask_b32 v{ACC[4+tt]+j}, v{ACC[4+tt]+j}, v6, s[34:35]")
    if kind == 'B':
        k("v_lshlrev_b32 v7, 4, v2\nv_lshl_add_u32 v7, v3, 3, v7     ; tok*16+hh*8")
        for tt in range(2):
            k(f"s_lshl_b32 s22, s18, 6\ns_lshl_b32 s23, s16, 1\ns_add_u32 s22, s22, s23\ns_add_u32 s22, s22, {tt}   ; h*64+T")
            k(f"s_lshl_b32 s23, s22, 11\ns_add_u32 s23, s23, {QF}")
            k(f"s_lshl_b32 s24, s22, 12\ns_add_u32 s24, s24, {KVF}")
            for which, acc, so in ((0, ACC[0+tt], 23), (1, ACC[2+tt], 24)):
                p = 16 + 16*which
                for j in range(8):
                    k(f"v_cvt_pk_bf16_f32 v{p+j}, v{acc+2*j}, v{acc+2*j+1}")
                for a in range(4):
                    k(f"buffer_store_dwordx2 v[{p+2*a}:{p+2*a+1}], v7, s[12:15], s{so} offen offset:{(a>>1)*1024+(a&1)*512}")
            p = 48
            for j in range(8):
                k(f"v_cvt_pk_bf16_f32 v{p+j}, v{ACC[4+tt]+2*j}, v{ACC[4+tt]+2*j+1}")
            k(f"buffer_store_dwordx4 v[{p}:{p+3}], v4, s[12:15], s24 offen offset:2048")
            k(f"buffer_store_dwordx4 v[{p+4}:{p+7}], v4, s[12:15], s24 offen offset:3072")
            k("s_nop 4")
    else:
        k(f"s_lshl_b32 s22, s18, 11\ns_add_u32 s22, s22, {WPHI}")
        k("buffer_load_dwordx4 v[200:203], v4, s[12:15], s22 offen\nbuffer_load_dwordx4 v[204:207], v4, s[12:15], s22 offen offset:1024")
        KVPOS, KVNEG = 208, 224
        for j in range(16): k(f"v_mov_b32 v{KVPOS+j}, 0\nv_mov_b32 v{KVNEG+j}, 0")
        k("v_and_b32 v8, 3, v2\nv_lshrrev_b32 v9, 2, v2\nv_and_b32 v9, 1, v9\nv_lshl_or_b32 v8, v9, 3, v8\nv_lshrrev_b32 v9, 3, v2\nv_and_b32 v9, 1, v9\nv_lshl_or_b32 v8, v9, 2, v8\nv_and_b32 v9, 16, v2\nv_or_b32 v8, v8, v9")
        k("s_mul_i32 s22, s3, 5120\ns_add_u32 s22, s22, 73728")
        k("v_mul_u32_u24 v9, 320, v3\nv_lshl_add_u32 v8, v8, 1, v9\nv_add_u32 v8, s22, v8")
        k("v_mul_u32_u24 v9, 80, v2\nv_lshl_add_u32 v9, v3, 4, v9\nv_add_u32 v9, s22, v9")
        k("s_waitcnt vmcnt(0)")
        QP, PP, X, POS, NEG, TT = 16, 24, 40, 56, 64, 72
        for tt in range(2):
            k(f"s_lshl_b32 s22, s18, 6\ns_lshl_b32 s23, s16, 1\ns_add_u32 s22, s22, s23\ns_add_u32 s22, s22, {tt}\ns_lshl_b32 s23, s22, 12\ns_add_u32 s23, s23, {PHIQ}")
            for which in range(2):
                acc = ACC[2*which + tt]
                for j in range(8):
                    k(f"v_cvt_pk_bf16_f32 v{QP+j}, v{acc+2*j}, v{acc+2*j+1}")
                k.nop(2)
                k(f"{MFMA} v[{PP}:{PP+15}], v[200:203], v[{QP}:{QP+3}], 0")
                k(f"{MFMA} v[{PP}:{PP+15}], v[204:207], v[{QP+4}:{QP+7}], v[{PP}:{PP+15}]")
                k.nop(16)
                feature(k, PP, X, POS, NEG, TT)
                if which == 0:
                    for i, r in enumerate((POS, POS+4, NEG, NEG+4)):
                        k(f"buffer_store_dwordx4 v[{r}:{r+3}], v4, s[12:15], s23 offen offset:{1024*i}")
                    k("s_nop 2")
                else:
                    for pn, r in enumerate((POS, NEG)):
                        for j in range(10):
                            a, rr = j >> 2, j & 3
                            op = "ds_write_b16" if j % 2 == 0 else "ds_write_b16_d16_hi"
                            k(f"{op} v8, v{r+j//2} offset:{pn*2560 + (8*a+rr)*80}")
                    k("s_waitcnt lgkmcnt(0)")
                    for pn in range(2):
                        for s_ in range(2):
                            k(f"ds_read_b128 v[{X+8*pn+4*s_}:{X+8*pn+4*s_+3}], v9 offset:{pn*2560+32*s_}")
                    VP = QP
                    for j in range(8):
                        k(f"v_cvt_pk_bf16_f32 v{VP+j}, v{ACC[4+tt]+2*j}, v{ACC[4+tt]+2*j+1}")
                    k("s_waitcnt lgkmcnt(0)")
                    k.nop(2)
                    for s_ in range(2):
                        k(f"{MFMA} v[{KVPOS}:{KVPOS+15}], v[{X+4*s_}:{X+4*s_+3}], v[{VP+4*s_}:{VP+4*s_+3}], v[{KVPOS}:{KVPOS+15}]")
                        k(f"{MFMA} v[{KVNEG}:{KVNEG+15}], v[{X+8+4*s_}:{X+8+4*s_+3}], v[{VP+4*s_}:{VP+4*s_+3}], v[{KVNEG}:{KVNEG+15}]")
        k.nop(16)
        k(f"s_lshl_b32 s22, s18, 5\ns_add_u32 s22, s22, s16\ns_lshl_b32 s22, s22, 13\ns_add_u32 s22, s22, {KVP}")
        for pn, r in enumerate((KVPOS, KVNEG)):
            for a in range(4):
                k(f"buffer_store_dwordx4 v[{r+4*a}:{r+4*a+3}], v4, s[12:15], s22 offen offset:{a*1024}")
            k("s_add_u32 s22, s22, 4096")
    k.label(end)
    return k, (256, 256, 73728 + 4*5120)
```

```python
import k_lnqkv, k_a2out, k_attn
from layout import *
def build(g):
    g.add(g.gen_prep)
    xs = [None, X1, X2, X3, None]
    for l in range(2):
        g.add(k_lnqkv.gen_lnqkv, f"a1_l{l}_kernel", 'A', xs[2*l], WQKV_A)
        g.add(k_a2out.gen_a2, f"a2_l{l}_kernel")
        g.add(k_a2out.gen_out, f"outa_l{l}_kernel", WO_A, xs[2*l], xs[2*l+1])
        g.add(k_lnqkv.gen_lnqkv, f"b1_l{l}_kernel", 'B', xs[2*l+1], WQKV_B)
        g.add(k_attn.gen_attn, f"b2_l{l}_kernel")
        g.add(k_a2out.gen_out, f"outb_l{l}_kernel", WO_B, xs[2*l+1], xs[2*l+2])
```

```python
S=2048; D=576; H=32; DH=18; N3=1728
KST=36
def al(x,a=4096): return (x+a-1)//a*a
off=0
WQKV_A=off; off+=96*KST*1024
WQKV_B=off; off+=96*KST*1024
WO_A=off; off+=18*KST*1024
WO_B=off; off+=18*KST*1024
WPHI=off; off+=64*1024
off=al(off)
X1=off; off+=S*D*2
X2=off; off+=S*D*2
X3=off; off+=S*D*2
OB=off; off+=S*D*2
off=al(off)
PHIQ=off; off+=H*64*4096
KVP=off; off+=H*32*8192
QF=off; off+=H*64*2048
KVF=off; off+=H*64*4096
WS_END=off
WS_SIZE=268435456
if __name__=="__main__":
    print(WS_END)
```

```python
import sys
from layout import *

OUTFILE = "interleave_layers__linear_kernel_hedgehog__softmax_full_mha__prompt.s"

def magic(d, maxx):
    for sh in range(1, 32):
        m = -(-(1 << sh) // d)
        if m * maxx >= (1 << 32): break
        if all((x * m) >> sh == x // d for x in range(maxx)): return m, sh
    raise ValueError

class Kern:
    def __init__(self, name, vgpr=256, sgpr=102):
        self.name = name; self.L = []; self.vgpr = vgpr; self.sgpr = sgpr; self.nlabel = 0
    def __call__(self, s):
        for line in s.strip("\n").split("\n"):
            line = line.strip()
            if line: self.L.append("    " + line)
    def label(self, l): self.L.append(l + ":")
    def newlabel(self, base="L"):
        self.nlabel += 1
        return f"{base}_{self.name}_{self.nlabel}"
    def nop(self, n):
        while n > 0:
            k = min(n, 16); self(f"s_nop {k-1}"); n -= k
    def text(self):
        out = [f".globl {self.name}", ".p2align 8", f".type {self.name},@function", f"{self.name}:"]
        out += self.L
        out.append("    s_endpgm")
        return "\n".join(out)
    def desc(self):
        acc = (self.vgpr + 3) // 4 * 4
        return f""".p2align 6
.amdhsa_kernel {self.name}
  .amdhsa_next_free_vgpr {self.vgpr}
  .amdhsa_next_free_sgpr {self.sgpr}
  .amdhsa_accum_offset {acc}
  .amdhsa_group_segment_fixed_size 0
  .amdhsa_kernarg_size 80
  .amdhsa_user_sgpr_count 2
  .amdhsa_user_sgpr_kernarg_segment_ptr 1
  .amdhsa_system_sgpr_workgroup_id_x 1
.end_amdhsa_kernel"""

def vr(b, n=1):
    return f"v{b}" if n == 1 else f"v[{b}:{b+n-1}]"
def sr(b, n=1):
    return f"s{b}" if n == 1 else f"s[{b}:{b+n-1}]"

def srd(k, sb, sptr, off, size):
    if off:
        k(f"s_add_u32 s{sb}, s{sptr}, {off}\ns_addc_u32 s{sb+1}, s{sptr+1}, 0")
    else:
        k(f"s_mov_b32 s{sb}, s{sptr}\ns_mov_b32 s{sb+1}, s{sptr+1}")
    k(f"s_mov_b32 s{sb+2}, {size}\ns_mov_b32 s{sb+3}, 0x00020000")

MFMA = "v_mfma_f32_32x32x16_bf16"

NFRAG = 2 * 96 * KST + 2 * 18 * KST + 64
def gen_prep():
    k = Kern("prep_kernel", vgpr=32, sgpr=48)
    nwg = NFRAG // 4
    k(f"s_cmp_ge_u32 s2, {nwg}\ns_cbranch_scc1 L_prep_end")
    k("s_load_dwordx4 s[4:7], s[0:1], 8")
    k("s_load_dwordx2 s[8:9], s[0:1], 24     ; A_wo")
    k("s_load_dwordx4 s[12:15], s[0:1], 40")
    k("s_load_dwordx2 s[10:11], s[0:1], 72   ; ws")
    k("v_lshrrev_b32 v1, 6, v0\ns_nop 0\nv_readfirstlane_b32 s3, v1")
    k("v_and_b32 v1, 63, v0                  ; lane")
    k("v_and_b32 v2, 31, v1                  ; c")
    k("v_lshrrev_b32 v3, 5, v1               ; hh")
    k("s_lshl_b32 s16, s2, 2\ns_add_u32 s16, s16, s3      ; frag")
    k("s_waitcnt lgkmcnt(0)")
    srd(k, 44, 10, 0, WS_SIZE)
    k("s_lshl_b32 s17, s16, 10\nv_lshlrev_b32 v4, 4, v1")
    k(f"s_cmp_ge_u32 s16, {2*96*KST + 2*18*KST}\ns_cbranch_scc1 L_prep_phi")
    k(f"s_cmp_ge_u32 s16, {2*96*KST}\ns_cbranch_scc1 L_prep_wo")
    k(f"s_cmp_ge_u32 s16, {96*KST}\ns_cselect_b32 s20, s12, s4\ns_cselect_b32 s21, s13, s5\ns_cselect_b32 s18, {96*KST}, 0\ns_sub_u32 s16, s16, s18")
    m, sh = magic(KST, 96 * KST)
    k(f"s_mul_i32 s18, s16, {m}\ns_lshr_b32 s18, s18, {sh}      ; t\ns_mul_i32 s19, s18, {KST}\ns_sub_u32 s19, s16, s19   ; s")
    k("s_lshr_b32 s22, s18, 5   ; part\ns_and_b32 s23, s18, 31  ; h")
    k("s_mul_i32 s22, s22, 576\ns_mul_i32 s23, s23, 18\ns_add_u32 s22, s22, s23")
    k("s_lshl_b32 s19, s19, 4   ; k0 = 16*s")
    k(f"s_mov_b32 s22, s22\ns_mov_b32 s23, {N3*2}")
    k("s_mov_b32 s40, s20\ns_mov_b32 s41, s21\ns_mov_b32 s42, %d\ns_mov_b32 s43, 0x00020000" % (D * N3 * 2))
    k("v_cmp_gt_u32 vcc, 18, v2")
    k("s_branch L_prep_common")
    k.label("L_prep_wo")
    k(f"s_sub_u32 s16, s16, {2*96*KST}")
    k(f"s_cmp_ge_u32 s16, {18*KST}\ns_cselect_b32 s20, s14, s8\ns_cselect_b32 s21, s15, s9\ns_cselect_b32 s18, {18*KST}, 0\ns_sub_u32 s16, s16, s18")
    m, sh = magic(KST, 96 * KST)
    k(f"s_mul_i32 s18, s16, {m}\ns_lshr_b32 s18, s18, {sh}      ; t\ns_mul_i32 s19, s18, {KST}\ns_sub_u32 s19, s16, s19   ; s")
    k("s_lshl_b32 s22, s18, 5\ns_lshl_b32 s19, s19, 4")
    k(f"s_mov_b32 s23, {D*2}")
    k("s_mov_b32 s40, s20\ns_mov_b32 s41, s21\ns_mov_b32 s42, %d\ns_mov_b32 s43, 0x00020000" % (D * D * 2))
    k("v_cmp_gt_u32 vcc, 32, v2")
    k.label("L_prep_common")
    k("v_lshlrev_b32 v5, 3, v3\nv_add_u32 v5, s19, v5\nv_mul_lo_u32 v5, v5, s23")
    k("v_add_u32 v6, s22, v2\nv_lshl_add_u32 v5, v6, 1, v5")
    k("v_mov_b32 v6, 0x40000000\nv_cndmask_b32 v5, v6, v5, vcc")
    for i in range(8):
        k(f"buffer_load_ushort v{8+i}, v5, s[40:43], 0 offen")
        if i < 7: k("v_add_u32 v5, s23, v5")
    k("s_branch L_prep_pack")
    k.label("L_prep_phi")
    k(f"s_sub_u32 s16, s16, {2*96*KST + 2*18*KST}")
    k("s_lshr_b32 s18, s16, 1   ; h\ns_and_b32 s19, s16, 1   ; s")
    k("s_mul_i32 s18, s18, 648\ns_lshl_b32 s19, s19, 4")
    k("s_mov_b32 s40, s6\ns_mov_b32 s41, s7\ns_mov_b32 s42, %d\ns_mov_b32 s43, 0x00020000" % (H * DH * DH * 2))
    for i in range(8):
        k(f"v_lshlrev_b32 v5, 2, v3\nv_add_u32 v5, {8*(i>>2) + (i&3)}, v5\nv_add_u32 v5, s19, v5")
        k("v_cmp_gt_u32 vcc, 18, v5\nv_cmp_gt_u32 s[24:25], 18, v2\ns_and_b64 vcc, vcc, s[24:25]")
        k("v_mul_u32_u24 v6, 36, v5\nv_add_u32 v6, s18, v6\nv_lshl_add_u32 v6, v2, 1, v6")
        k("v_mov_b32 v7, 0x40000000\nv_cndmask_b32 v6, v7, v6, vcc")
        k(f"buffer_load_ushort v{8+i}, v6, s[40:43], 0 offen")
    k.label("L_prep_pack")
    k("s_waitcnt vmcnt(0)")
    for j in range(4):
        k(f"v_lshl_or_b32 v{16+j}, v{9+2*j}, 16, v{8+2*j}")
    k("buffer_store_dwordx4 v[16:19], v4, s[44:47], s17 offen")
    k.label("L_prep_end")
    return k, (nwg, 256, 0)

KERNELS = []
LAUNCHES = []
def add(kgen, *args):
    k, (grid, block, lds) = kgen(*args)
    KERNELS.append(k); LAUNCHES.append((k.name, grid, block, lds))

def emit():
    hdr = open(OUTFILE + ".ref").read().split("\n")
    head = [l for l in hdr if l.startswith(";") and "@launch" not in l]
    out = head[:]
    for name, g, b, lds in LAUNCHES:
        out.append(f"; @launch kernel={name} grid=({g},1,1) block=({b},1,1) lds={lds}")
    out.append('.amdgcn_target "amdgcn-amd-amdhsa--gfx950"')
    out.append(".text")
    for k in KERNELS: out.append(k.text())
    out.append('.section .rodata,"a"')
    for k in KERNELS: out.append(k.desc())
    open(OUTFILE, "w").write("\n".join(out) + "\n")

if __name__ == "__main__":
    import kernels
    kernels.build(sys.modules[__name__])
    emit()
```

```python
from layout import *
from gen import Kern, srd, MFMA

def common_head(k, end, nwg):
    k(f"s_cmp_ge_u32 s2, {nwg}\ns_cbranch_scc1 {end}")
    k("s_load_dwordx2 s[4:5], s[0:1], 72\ns_load_dwordx2 s[6:7], s[0:1], 0\ns_load_dwordx2 s[36:37], s[0:1], 56")
    k("v_lshrrev_b32 v1, 6, v0\ns_nop 0\nv_readfirstlane_b32 s3, v1")
    k("v_and_b32 v1, 63, v0\nv_and_b32 v2, 31, v1\nv_lshrrev_b32 v3, 5, v1\nv_lshlrev_b32 v4, 4, v1")
    k("s_mov_b32 s30, -1\ns_mov_b32 s31, 0")
    k("s_waitcnt lgkmcnt(0)")
    srd(k, 12, 4, 0, WS_SIZE)

def gen_a2(name):
    k = Kern(name, vgpr=256, sgpr=64)
    end = f"L_{name}_end"
    common_head(k, end, 256)
    k("s_lshr_b32 s18, s2, 3      ; head\ns_and_b32 s16, s2, 7     ; qb")
    k(f"s_lshl_b32 s22, s18, 5\ns_lshl_b32 s23, s3, 3\ns_add_u32 s22, s22, s23\ns_lshl_b32 s22, s22, 13\ns_add_u32 s22, s22, {KVP}")
    ACCR = 16
    BUF = 64
    for b in range(2):
        for r in range(4):
            for i in range(8):
                k(f"buffer_load_dwordx4 v[{BUF+32*r+4*i}:{BUF+32*r+4*i+3}], v4, s[12:15], s22 offen offset:{1024*(i&3)}")
                if i == 3 or i == 7: k("s_add_u32 s22, s22, 4096")
        k("s_waitcnt vmcnt(0)")
        for r in range(4):
            for j in range(32):
                if b == 0 and r == 0: k(f"v_mov_b32 v{ACCR+j}, v{BUF+j}")
                else: k(f"v_add_f32 v{ACCR+j}, v{ACCR+j}, v{BUF+32*r+j}")
    k("s_lshl_b32 s22, s3, 13\nv_add_u32 v5, s22, v4")
    for i in range(8):
        k(f"ds_write_b128 v5, v[{ACCR+4*i}:{ACCR+4*i+3}] offset:{1024*i}")
    k("s_waitcnt lgkmcnt(0)\ns_barrier")
    for w in range(4):
        for i in range(8):
            k(f"ds_read_b128 v[{BUF+32*w+4*i}:{BUF+32*w+4*i+3}], v4 offset:{8192*w+1024*i}")
    k("s_waitcnt lgkmcnt(0)")
    for j in range(32):
        k(f"v_add_f32 v{ACCR+j}, v{BUF+j}, v{BUF+32+j}\nv_add_f32 v{BUF+64+j}, v{BUF+64+j}, v{BUF+96+j}\nv_add_f32 v{ACCR+j}, v{ACCR+j}, v{BUF+64+j}")
    KVF_ = 48
    for pn in range(2):
        for j in range(5):
            k(f"v_cvt_pk_bf16_f32 v{KVF_+8*pn+j}, v{ACCR+16*pn+2*j}, v{ACCR+16*pn+2*j+1}")
        k(f"v_cndmask_b32 v{KVF_+8*pn+4}, 0, v{KVF_+8*pn+4}, s[30:31]")
        for j in range(5, 8): k(f"v_mov_b32 v{KVF_+8*pn+j}, 0")
    PQ = 64; NUM = 80
    for tt in range(2):
        k(f"s_lshl_b32 s22, s16, 3\ns_lshl_b32 s23, s3, 1\ns_add_u32 s22, s22, s23\ns_add_u32 s22, s22, {tt}    ; T")
        k(f"s_lshl_b32 s23, s18, 6\ns_add_u32 s23, s23, s22\ns_lshl_b32 s23, s23, 12\ns_add_u32 s23, s23, {PHIQ}")
        for i in range(4):
            k(f"buffer_load_dwordx4 v[{PQ+4*i}:{PQ+4*i+3}], v4, s[12:15], s23 offen offset:{1024*i}")
        k(f"s_lshl_b32 s22, s22, 5\nv_add_u32 v6, s22, v2\nv_mul_u32_u24 v6, 1152, v6\ns_mul_i32 s23, s18, 36\nv_lshl_add_u32 v6, v3, 3, v6\nv_add_u32 v6, s23, v6")
        k("s_waitcnt vmcnt(0)")
        for i in range(4):
            c = "0" if i == 0 else f"v[{NUM}:{NUM+15}]"
            k(f"{MFMA} v[{NUM}:{NUM+15}], v[{KVF_+4*i}:{KVF_+4*i+3}], v[{PQ+4*i}:{PQ+4*i+3}], {c}")
        k.nop(16)
        k(f"v_mov_b32 v8, v{NUM+10}\nv_mov_b32 v9, v{NUM+10}")
        k.nop(2)
        k("v_permlane32_swap_b32 v8, v9")
        k("v_cvt_pk_bf16_f32 v8, v8, v8\nv_lshlrev_b32 v8, 16, v8\nv_add_f32 v8, 0x358637bd, v8\nv_cvt_pk_bf16_f32 v8, v8, v8\nv_lshlrev_b32 v8, 16, v8\nv_rcp_f32 v8, v8\ns_nop 0")
        for j in range(0, 10, 2):
            k(f"v_cvt_pk_bf16_f32 v9, v{NUM+j}, v{NUM+j+1}\nv_lshlrev_b32 v{NUM+j}, 16, v9\nv_and_b32 v{NUM+j+1}, 0xffff0000, v9")
            k(f"v_mul_f32 v{NUM+j}, v{NUM+j}, v8\nv_mul_f32 v{NUM+j+1}, v{NUM+j+1}, v8")
            k(f"v_cvt_pk_bf16_f32 v{100+j//2}, v{NUM+j}, v{NUM+j+1}")
        for a in range(2):
            k(f"buffer_store_dword v{100+2*a}, v6, s[12:15], s{24} offen offset:{16*a}" .replace("s24", "s25"))
            k(f"buffer_store_dword v{101+2*a}, v6, s[12:15], s25 offen offset:{16*a+4}")
        k("s_mov_b64 exec, s[30:31]")
        k("buffer_store_dword v104, v6, s[12:15], s25 offen offset:32")
        k("s_mov_b64 exec, -1")
    k.label(end)
    k.L.insert(k.L.index("    s_lshr_b32 s18, s2, 3      ; head"), f"    s_mov_b32 s25, {OB}")
    return k, (256, 256, 32768)

def gen_out(name, wo_off, xsrc, xdst):
    k = Kern(name, vgpr=168, sgpr=64)
    end = f"L_{name}_end"
    common_head(k, end, 288)
    if xsrc is None: srd(k, 8, 6, 0, S*D*2)
    else: srd(k, 8, 4, xsrc, S*D*2)
    if xdst is None: srd(k, 40, 36, 0, S*D*2)
    else: srd(k, 40, 4, xdst, S*D*2)
    m, sh = 7282, 16
    k(f"s_mul_i32 s16, s2, {m}\ns_lshr_b32 s16, s16, {sh}\ns_mul_i32 s17, s16, 9\ns_sub_u32 s17, s2, s17")
    k("s_lshl_b32 s16, s16, 1\ns_and_b32 s18, s3, 1\ns_add_u32 s16, s16, s18")
    k("s_lshl_b32 s17, s17, 1\ns_lshr_b32 s18, s3, 1\ns_add_u32 s17, s17, s18")
    k(f"s_mul_i32 s19, s17, {KST*1024}\ns_add_u32 s19, s19, {wo_off}")
    k(f"s_lshl_b32 s20, s16, 5\nv_add_u32 v5, s20, v2\nv_mul_u32_u24 v5, 1152, v5\nv_lshl_add_u32 v6, v3, 4, v5\ns_mov_b32 s21, {OB}")
    ACC = 16
    PD = 14
    WR = lambda s: 40 + 8*(s % (PD+1))
    def load(s):
        k(f"buffer_load_dwordx4 v[{WR(s)}:{WR(s)+3}], v4, s[12:15], s19 offen\nbuffer_load_dwordx4 v[{WR(s)+4}:{WR(s)+7}], v6, s[12:15], s21 offen offset:{32*s}\ns_add_u32 s19, s19, 1024")
    for s in range(PD): load(s)
    for s in range(KST):
        if s + PD < KST: load(s + PD)
        k(f"s_waitcnt vmcnt({2*(min(s+PD, KST-1)-s)})")
        c = "0" if s == 0 else f"v[{ACC}:{ACC+15}]"
        k(f"{MFMA} v[{ACC}:{ACC+15}], v[{WR(s)}:{WR(s)+3}], v[{WR(s)+4}:{WR(s)+7}], {c}")
    k("s_lshl_b32 s20, s17, 6\nv_lshl_add_u32 v7, v3, 3, v5\nv_add_u32 v7, s20, v7")
    for a in range(4):
        k(f"buffer_load_dwordx2 v[{8+2*a}:{9+2*a}], v7, s[8:11], 0 offen offset:{16*a}")
    k.nop(16)
    for j in range(8):
        k(f"v_cvt_pk_bf16_f32 v{90+j}, v{ACC+2*j}, v{ACC+2*j+1}")
    k("s_waitcnt vmcnt(0)")
    for j in range(8):
        k(f"v_lshlrev_b32 v100, 16, v{90+j}\nv_and_b32 v101, 0xffff0000, v{90+j}\nv_lshlrev_b32 v102, 16, v{8+j}\nv_and_b32 v103, 0xffff0000, v{8+j}")
        k(f"v_add_f32 v100, v100, v102\nv_add_f32 v101, v101, v103\nv_cvt_pk_bf16_f32 v{90+j}, v100, v101")
    for a in range(4):
        k(f"buffer_store_dwordx2 v[{90+2*a}:{91+2*a}], v7, s[40:43], 0 offen offset:{16*a}")
    k.label(end)
    return k, (288, 256, 0)
```

```python
import struct
from layout import *
from gen import Kern, srd, MFMA
from k_a2out import common_head

def gen_attn(name):
    k = Kern(name, vgpr=128, sgpr=64)
    end = f"L_{name}_end"
    common_head(k, end, 256)
    c = (18 ** -0.5) * 1.4426950408889634
    cbits = struct.unpack("<I", struct.pack("<f", c))[0]
    k(f"s_lshr_b32 s18, s2, 3\ns_and_b32 s16, s2, 7\ns_mov_b32 s25, {OB}\ns_mov_b32 s33, {cbits}")
    k("s_lshl_b32 s22, s16, 3\ns_add_u32 s22, s22, s3      ; T")
    k(f"s_lshl_b32 s23, s18, 6\ns_add_u32 s23, s23, s22\ns_lshl_b32 s23, s23, 11\ns_add_u32 s23, s23, {QF}")
    k("buffer_load_dwordx4 v[8:11], v4, s[12:15], s23 offen\nbuffer_load_dwordx4 v[12:15], v4, s[12:15], s23 offen offset:1024")
    k(f"s_lshl_b32 s19, s18, 18\ns_add_u32 s19, s19, {KVF}")
    k("v_lshlrev_b32 v5, 4, v0     ; tid*16")
    G = 96
    def gload():
        for i in range(4):
            k(f"buffer_load_dwordx4 v[{G+4*i}:{G+4*i+3}], v5, s[12:15], s19 offen")
            k("s_add_u32 s19, s19, 8192")
    def lwrite(vaddr):
        for i in range(4):
            k(f"ds_write_b128 {vaddr}, v[{G+4*i}:{G+4*i+3}] offset:{8192*i}")
    gload()
    for j in range(16): k(f"v_mov_b32 v{48+j}, 0")
    k("v_mov_b32 v16, 0xff800000")
    k("v_mov_b32 v6, v5\nv_mov_b32 v7, v4")
    k("s_waitcnt vmcnt(0)")
    lwrite("v6")
    k("s_waitcnt lgkmcnt(0)\ns_barrier")
    k("v_xor_b32 v6, 0x8000, v6")
    k("s_mov_b32 s20, 0")
    loop = f"L_{name}_loop"
    k.label(loop)
    k("s_cmp_eq_u32 s20, 7")
    k(f"s_cbranch_scc1 L_{name}_nog")
    gload()
    k.label(f"L_{name}_nog")
    KB = lambda t: 72 + 8*(t % 2)
    def kread(t):
        k(f"ds_read_b128 v[{KB(t)}:{KB(t)+3}], v7 offset:{4096*t}\nds_read_b128 v[{KB(t)+4}:{KB(t)+7}], v7 offset:{4096*t+1024}")
    kread(0)
    O, P = 48, 64
    SB = lambda t: (32 if t % 2 == 0 else 112)
    def smfma(t):
        Sg = SB(t)
        k(f"{MFMA} v[{Sg}:{Sg+15}], v[{KB(t)}:{KB(t)+3}], v[8:11], 0")
        k(f"{MFMA} v[{Sg}:{Sg+15}], v[{KB(t)+4}:{KB(t)+7}], v[12:15], v[{Sg}:{Sg+15}]")
    kread(1)
    k("s_waitcnt lgkmcnt(2)")
    smfma(0)
    k.nop(8)
    for t in range(8):
        Sg = SB(t)
        k(f"ds_read_b128 v[88:91], v7 offset:{4096*t+2048}\nds_read_b128 v[92:95], v7 offset:{4096*t+3072}")
        if t < 7:
            k("s_waitcnt lgkmcnt(2)")
            smfma(t+1)
            if t < 6: kread(t+2)
        else:
            k.nop(8)
        k(f"v_max3_f32 v17, v{Sg}, v{Sg+1}, v{Sg+2}")
        for j in range(3, 15, 2):
            k(f"v_max3_f32 v17, v17, v{Sg+j}, v{Sg+j+1}")
        k(f"v_max_f32 v17, v17, v{Sg+15}")
        k("v_mov_b32 v18, v17")
        k.nop(2)
        k("v_permlane32_swap_b32 v17, v18\nv_max_f32 v17, v17, v18")
        k("v_mul_f32 v17, s33, v17\nv_max_f32 v17, v16, v17\nv_sub_f32 v18, v16, v17\nv_mov_b32 v16, v17\nv_exp_f32 v18, v18")
        for j in range(16):
            k(f"v_fma_f32 v{Sg+j}, v{Sg+j}, s33, -v16")
        for j in range(16):
            k(f"v_exp_f32 v{Sg+j}, v{Sg+j}")
        for j in range(12):
            k(f"v_mul_f32 v{O+j}, v{O+j}, v18")
        for j in range(8):
            k(f"v_cvt_pk_bf16_f32 v{P+j}, v{Sg+2*j}, v{Sg+2*j+1}")
        k(f"s_waitcnt lgkmcnt({2 if t < 6 else 0})")
        k.nop(2)
        k(f"{MFMA} v[{O}:{O+15}], v[88:91], v[{P}:{P+3}], v[{O}:{O+15}]")
        k(f"{MFMA} v[{O}:{O+15}], v[92:95], v[{P+4}:{P+7}], v[{O}:{O+15}]")
    k("s_cmp_eq_u32 s20, 7")
    k(f"s_cbranch_scc1 L_{name}_fin")
    k("s_waitcnt vmcnt(0)")
    lwrite("v6")
    k("s_waitcnt lgkmcnt(0)\ns_barrier")
    k("v_xor_b32 v6, 0x8000, v6\nv_xor_b32 v7, 0x8000, v7\ns_add_u32 s20, s20, 1")
    k(f"s_branch {loop}")
    k.label(f"L_{name}_fin")
    k.nop(16)
    k(f"v_mov_b32 v17, v{O+10}\nv_mov_b32 v18, v{O+10}")
    k.nop(2)
    k("v_permlane32_swap_b32 v17, v18\nv_rcp_f32 v17, v17\ns_nop 0")
    for j in range(0, 10, 2):
        k(f"v_mul_f32 v{O+j}, v{O+j}, v17\nv_mul_f32 v{O+j+1}, v{O+j+1}, v17\nv_cvt_pk_bf16_f32 v{P+j//2}, v{O+j}, v{O+j+1}")
    k("s_lshl_b32 s22, s22, 5\nv_add_u32 v6, s22, v2\nv_mul_u32_u24 v6, 1152, v6\ns_mul_i32 s23, s18, 36\nv_lshl_add_u32 v6, v3, 3, v6\nv_add_u32 v6, s23, v6")
    for a in range(2):
        k(f"buffer_store_dword v{P+2*a}, v6, s[12:15], s25 offen offset:{16*a}\nbuffer_store_dword v{P+1+2*a}, v6, s[12:15], s25 offen offset:{16*a+4}")
    k(f"s_mov_b64 exec, s[30:31]\nbuffer_store_dword v{P+4}, v6, s[12:15], s25 offen offset:32\ns_mov_b64 exec, -1")
    k.label(end)
    return k, (256, 512, 65536)
```

```python
from layout import *
from gen import Kern, srd, MFMA

def common_head(k, end, nwg):
    k(f"s_cmp_ge_u32 s2, {nwg}\ns_cbranch_scc1 {end}")
    k("s_load_dwordx2 s[4:5], s[0:1], 72\ns_load_dwordx2 s[6:7], s[0:1], 0\ns_load_dwordx2 s[36:37], s[0:1], 56")
    k("v_lshrrev_b32 v1, 6, v0\ns_nop 0\nv_readfirstlane_b32 s3, v1")
    k("v_and_b32 v1, 63, v0\nv_and_b32 v2, 31, v1\nv_lshrrev_b32 v3, 5, v1\nv_lshlrev_b32 v4, 4, v1")
    k("s_mov_b32 s30, -1\ns_mov_b32 s31, 0")
    k("s_waitcnt lgkmcnt(0)")
    srd(k, 12, 4, 0, WS_SIZE)


def ostore(k, regs, sT, t0):
    k(f"s_mul_i32 s26, {sT}, 36864\ns_add_u32 s26, s26, {OB}\ns_mul_i32 s27, s18, 18")
    k(f"v_lshlrev_b32 v{t0+2}, 2, v3\nv_add_u32 v{t0+2}, s27, v{t0+2}")
    for i, dd in enumerate((0, 2, 8, 10, 16)):
        k(f"v_add_u32 v{t0}, {dd}, v{t0+2}")
        k(f"v_lshrrev_b32 v{t0+1}, 4, v{t0}\nv_lshlrev_b32 v{t0+1}, 10, v{t0+1}\nv_lshl_add_u32 v{t0+1}, v2, 4, v{t0+1}")
        k(f"v_bfe_u32 v{t0+3}, v{t0}, 3, 1\nv_lshl_add_u32 v{t0+1}, v{t0+3}, 9, v{t0+1}")
        k(f"v_and_b32 v{t0+3}, 7, v{t0}\nv_lshl_add_u32 v{t0+1}, v{t0+3}, 1, v{t0+1}")
        if i == 4: k("s_mov_b64 exec, s[30:31]")
        k(f"buffer_store_dword v{regs+i}, v{t0+1}, s[12:15], s26 offen")
        if i == 4: k("s_mov_b64 exec, -1")

def gen_a2(name):
    k = Kern(name, vgpr=256, sgpr=64)
    end = f"L_{name}_end"
    common_head(k, end, 256)
    k("s_lshr_b32 s18, s2, 3      ; head\ns_and_b32 s16, s2, 7     ; qb")
    k(f"s_lshl_b32 s22, s18, 5\ns_lshl_b32 s23, s3, 3\ns_add_u32 s22, s22, s23\ns_lshl_b32 s22, s22, 13\ns_add_u32 s22, s22, {KVP}")
    ACCR = 16
    BUF = 64
    for b in range(2):
        for r in range(4):
            for i in range(8):
                k(f"buffer_load_dwordx4 v[{BUF+32*r+4*i}:{BUF+32*r+4*i+3}], v4, s[12:15], s22 offen offset:{1024*(i&3)}")
                if i == 3 or i == 7: k("s_add_u32 s22, s22, 4096")
        k("s_waitcnt vmcnt(0)")
        for r in range(4):
            for j in range(32):
                if b == 0 and r == 0: k(f"v_mov_b32 v{ACCR+j}, v{BUF+j}")
                else: k(f"v_add_f32 v{ACCR+j}, v{ACCR+j}, v{BUF+32*r+j}")
    k("s_lshl_b32 s22, s3, 13\nv_add_u32 v5, s22, v4")
    for i in range(8):
        k(f"ds_write_b128 v5, v[{ACCR+4*i}:{ACCR+4*i+3}] offset:{1024*i}")
    k("s_waitcnt lgkmcnt(0)\ns_barrier")
    for w in range(4):
        for i in range(8):
            k(f"ds_read_b128 v[{BUF+32*w+4*i}:{BUF+32*w+4*i+3}], v4 offset:{8192*w+1024*i}")
    k("s_waitcnt lgkmcnt(0)")
    for j in range(32):
        k(f"v_add_f32 v{ACCR+j}, v{BUF+j}, v{BUF+32+j}\nv_add_f32 v{BUF+64+j}, v{BUF+64+j}, v{BUF+96+j}\nv_add_f32 v{ACCR+j}, v{ACCR+j}, v{BUF+64+j}")
    KVF_ = 48
    for pn in range(2):
        for j in range(5):
            k(f"v_cvt_pk_bf16_f32 v{KVF_+8*pn+j}, v{ACCR+16*pn+2*j}, v{ACCR+16*pn+2*j+1}")
        k(f"v_cndmask_b32 v{KVF_+8*pn+4}, 0, v{KVF_+8*pn+4}, s[30:31]")
        for j in range(5, 8): k(f"v_mov_b32 v{KVF_+8*pn+j}, 0")
    PQ = 64; NUM = 80
    for tt in range(2):
        k(f"s_lshl_b32 s22, s16, 3\ns_lshl_b32 s23, s3, 1\ns_add_u32 s22, s22, s23\ns_add_u32 s22, s22, {tt}    ; T")
        k(f"s_lshl_b32 s23, s18, 6\ns_add_u32 s23, s23, s22\ns_lshl_b32 s23, s23, 12\ns_add_u32 s23, s23, {PHIQ}")
        for i in range(4):
            k(f"buffer_load_dwordx4 v[{PQ+4*i}:{PQ+4*i+3}], v4, s[12:15], s23 offen offset:{1024*i}")
        k(f"s_lshl_b32 s22, s22, 5\nv_add_u32 v6, s22, v2\nv_mul_u32_u24 v6, 1152, v6\ns_mul_i32 s23, s18, 36\nv_lshl_add_u32 v6, v3, 3, v6\nv_add_u32 v6, s23, v6")
        k("s_waitcnt vmcnt(0)")
        for i in range(4):
            c = "0" if i == 0 else f"v[{NUM}:{NUM+15}]"
            k(f"{MFMA} v[{NUM}:{NUM+15}], v[{KVF_+4*i}:{KVF_+4*i+3}], v[{PQ+4*i}:{PQ+4*i+3}], {c}")
        k.nop(16)
        k(f"v_mov_b32 v8, v{NUM+10}\nv_mov_b32 v9, v{NUM+10}")
        k.nop(2)
        k("v_permlane32_swap_b32 v8, v9")
        k("v_cvt_pk_bf16_f32 v8, v8, v8\nv_lshlrev_b32 v8, 16, v8\nv_add_f32 v8, 0x358637bd, v8\nv_cvt_pk_bf16_f32 v8, v8, v8\nv_lshlrev_b32 v8, 16, v8\nv_rcp_f32 v8, v8\ns_nop 0")
        for j in range(0, 10, 2):
            k(f"v_cvt_pk_bf16_f32 v9, v{NUM+j}, v{NUM+j+1}\nv_lshlrev_b32 v{NUM+j}, 16, v9\nv_and_b32 v{NUM+j+1}, 0xffff0000, v9")
            k(f"v_mul_f32 v{NUM+j}, v{NUM+j}, v8\nv_mul_f32 v{NUM+j+1}, v{NUM+j+1}, v8")
            k(f"v_cvt_pk_bf16_f32 v{100+j//2}, v{NUM+j}, v{NUM+j+1}")
        k("s_lshr_b32 s22, s22, 5")
        ostore(k, 100, "s22", 110)
    k.label(end)
    k.L.insert(k.L.index("    s_lshr_b32 s18, s2, 3      ; head"), f"    s_mov_b32 s25, {OB}")
    return k, (256, 256, 32768)

def gen_out(name, wo_off, xsrc, xdst):
    k = Kern(name, vgpr=168, sgpr=64)
    end = f"L_{name}_end"
    common_head(k, end, 288)
    if xsrc is None: srd(k, 8, 6, 0, S*D*2)
    else: srd(k, 8, 4, xsrc, S*D*2)
    if xdst is None: srd(k, 40, 36, 0, S*D*2)
    else: srd(k, 40, 4, xdst, S*D*2)
    m, sh = 7282, 16
    k(f"s_mul_i32 s16, s2, {m}\ns_lshr_b32 s16, s16, {sh}\ns_mul_i32 s17, s16, 9\ns_sub_u32 s17, s2, s17")
    k("s_lshl_b32 s16, s16, 1\ns_and_b32 s18, s3, 1\ns_add_u32 s16, s16, s18")
    k("s_lshl_b32 s17, s17, 1\ns_lshr_b32 s18, s3, 1\ns_add_u32 s17, s17, s18")
    k(f"s_mul_i32 s19, s17, {KST*1024}\ns_add_u32 s19, s19, {wo_off}")
    k(f"s_lshl_b32 s20, s16, 5\nv_add_u32 v5, s20, v2\nv_mul_u32_u24 v5, 1152, v5\nv_lshl_add_u32 v6, v3, 4, v5\ns_mul_i32 s21, s16, 36864\ns_add_u32 s21, s21, {OB}")
    ACC = 16
    PD = 14
    WR = lambda s: 40 + 8*(s % (PD+1))
    def load(s):
        k(f"buffer_load_dwordx4 v[{WR(s)}:{WR(s)+3}], v4, s[12:15], s19 offen\nbuffer_load_dwordx4 v[{WR(s)+4}:{WR(s)+7}], v4, s[12:15], s21 offen\ns_add_u32 s19, s19, 1024\ns_add_u32 s21, s21, 1024")
    for s in range(PD): load(s)
    for s in range(KST):
        if s + PD < KST: load(s + PD)
        k(f"s_waitcnt vmcnt({2*(min(s+PD, KST-1)-s)})")
        c = "0" if s == 0 else f"v[{ACC}:{ACC+15}]"
        k(f"{MFMA} v[{ACC}:{ACC+15}], v[{WR(s)}:{WR(s)+3}], v[{WR(s)+4}:{WR(s)+7}], {c}")
    k("s_lshl_b32 s20, s17, 6\nv_lshl_add_u32 v7, v3, 3, v5\nv_add_u32 v7, s20, v7")
    for a in range(4):
        k(f"buffer_load_dwordx2 v[{8+2*a}:{9+2*a}], v7, s[8:11], 0 offen offset:{16*a}")
    k.nop(16)
    for j in range(8):
        k(f"v_cvt_pk_bf16_f32 v{90+j}, v{ACC+2*j}, v{ACC+2*j+1}")
    k("s_waitcnt vmcnt(0)")
    for j in range(8):
        k(f"v_lshlrev_b32 v100, 16, v{90+j}\nv_and_b32 v101, 0xffff0000, v{90+j}\nv_lshlrev_b32 v102, 16, v{8+j}\nv_and_b32 v103, 0xffff0000, v{8+j}")
        k(f"v_add_f32 v100, v100, v102\nv_add_f32 v101, v101, v103\nv_cvt_pk_bf16_f32 v{90+j}, v100, v101")
    for a in range(4):
        k(f"buffer_store_dwordx2 v[{90+2*a}:{91+2*a}], v7, s[40:43], 0 offen offset:{16*a}")
    k.label(end)
    return k, (288, 256, 0)
```

```python
import struct
from layout import *
from gen import Kern, srd, MFMA
from k_a2out import common_head, ostore

def gen_attn(name):
    k = Kern(name, vgpr=128, sgpr=64)
    end = f"L_{name}_end"
    common_head(k, end, 256)
    c = (18 ** -0.5) * 1.4426950408889634
    cbits = struct.unpack("<I", struct.pack("<f", c))[0]
    k(f"s_lshr_b32 s18, s2, 3\ns_and_b32 s16, s2, 7\ns_mov_b32 s25, {OB}\ns_mov_b32 s33, {cbits}")
    k("s_lshl_b32 s22, s16, 3\ns_add_u32 s22, s22, s3      ; T")
    k(f"s_lshl_b32 s23, s18, 6\ns_add_u32 s23, s23, s22\ns_lshl_b32 s23, s23, 11\ns_add_u32 s23, s23, {QF}")
    k("buffer_load_dwordx4 v[8:11], v4, s[12:15], s23 offen\nbuffer_load_dwordx4 v[12:15], v4, s[12:15], s23 offen offset:1024")
    k(f"s_lshl_b32 s19, s18, 18\ns_add_u32 s19, s19, {KVF}")
    k("v_lshlrev_b32 v5, 4, v0     ; tid*16")
    G = 96
    def gload():
        for i in range(4):
            k(f"buffer_load_dwordx4 v[{G+4*i}:{G+4*i+3}], v5, s[12:15], s19 offen")
            k("s_add_u32 s19, s19, 8192")
    def lwrite(vaddr):
        for i in range(4):
            k(f"ds_write_b128 {vaddr}, v[{G+4*i}:{G+4*i+3}] offset:{8192*i}")
    gload()
    for j in range(16): k(f"v_mov_b32 v{48+j}, 0")
    k("v_mov_b32 v16, 0xff800000")
    k("v_mov_b32 v6, v5\nv_mov_b32 v7, v4")
    k("s_waitcnt vmcnt(0)")
    lwrite("v6")
    k("s_waitcnt lgkmcnt(0)\ns_barrier")
    k("v_xor_b32 v6, 0x8000, v6")
    k("s_mov_b32 s20, 0")
    loop = f"L_{name}_loop"
    k.label(loop)
    k("s_cmp_eq_u32 s20, 7")
    k(f"s_cbranch_scc1 L_{name}_nog")
    gload()
    k.label(f"L_{name}_nog")
    KB = lambda t: 72 + 8*(t % 2)
    def kread(t):
        k(f"ds_read_b128 v[{KB(t)}:{KB(t)+3}], v7 offset:{4096*t}\nds_read_b128 v[{KB(t)+4}:{KB(t)+7}], v7 offset:{4096*t+1024}")
    kread(0)
    O, P = 48, 64
    SB = lambda t: (32 if t % 2 == 0 else 112)
    def smfma(t):
        Sg = SB(t)
        k(f"{MFMA} v[{Sg}:{Sg+15}], v[{KB(t)}:{KB(t)+3}], v[8:11], 0")
        k(f"{MFMA} v[{Sg}:{Sg+15}], v[{KB(t)+4}:{KB(t)+7}], v[12:15], v[{Sg}:{Sg+15}]")
    kread(1)
    k("s_waitcnt lgkmcnt(2)")
    smfma(0)
    k.nop(8)
    for t in range(8):
        Sg = SB(t)
        k(f"ds_read_b128 v[88:91], v7 offset:{4096*t+2048}\nds_read_b128 v[92:95], v7 offset:{4096*t+3072}")
        if t < 7:
            k("s_waitcnt lgkmcnt(2)")
            smfma(t+1)
            if t < 6: kread(t+2)
        else:
            k.nop(8)
        k(f"v_max3_f32 v17, v{Sg}, v{Sg+1}, v{Sg+2}")
        for j in range(3, 15, 2):
            k(f"v_max3_f32 v17, v17, v{Sg+j}, v{Sg+j+1}")
        k(f"v_max_f32 v17, v17, v{Sg+15}")
        k("v_mov_b32 v18, v17")
        k.nop(2)
        k("v_permlane32_swap_b32 v17, v18\nv_max_f32 v17, v17, v18")
        k("v_mul_f32 v17, s33, v17\nv_max_f32 v17, v16, v17\nv_sub_f32 v18, v16, v17\nv_mov_b32 v16, v17\nv_exp_f32 v18, v18")
        for j in range(16):
            k(f"v_fma_f32 v{Sg+j}, v{Sg+j}, s33, -v16")
        for j in range(16):
            k(f"v_exp_f32 v{Sg+j}, v{Sg+j}")
        for j in range(12):
            k(f"v_mul_f32 v{O+j}, v{O+j}, v18")
        for j in range(8):
            k(f"v_cvt_pk_bf16_f32 v{P+j}, v{Sg+2*j}, v{Sg+2*j+1}")
        k(f"s_waitcnt lgkmcnt({2 if t < 6 else 0})")
        k.nop(2)
        k(f"{MFMA} v[{O}:{O+15}], v[88:91], v[{P}:{P+3}], v[{O}:{O+15}]")
        k(f"{MFMA} v[{O}:{O+15}], v[92:95], v[{P+4}:{P+7}], v[{O}:{O+15}]")
    k("s_cmp_eq_u32 s20, 7")
    k(f"s_cbranch_scc1 L_{name}_fin")
    k("s_waitcnt vmcnt(0)")
    lwrite("v6")
    k("s_waitcnt lgkmcnt(0)\ns_barrier")
    k("v_xor_b32 v6, 0x8000, v6\nv_xor_b32 v7, 0x8000, v7\ns_add_u32 s20, s20, 1")
    k(f"s_branch {loop}")
    k.label(f"L_{name}_fin")
    k.nop(16)
    k(f"v_mov_b32 v17, v{O+10}\nv_mov_b32 v18, v{O+10}")
    k.nop(2)
    k("v_permlane32_swap_b32 v17, v18\nv_rcp_f32 v17, v17\ns_nop 0")
    for j in range(0, 10, 2):
        k(f"v_mul_f32 v{O+j}, v{O+j}, v17\nv_mul_f32 v{O+j+1}, v{O+j+1}, v17\nv_cvt_pk_bf16_f32 v{P+j//2}, v{O+j}, v{O+j+1}")
    ostore(k, P, "s22", 20)
    k.label(end)
    return k, (256, 512, 65536)
```
